```python
import torch

def _softmax(x, axis=-1):
    return torch.softmax(x, dim=axis)
def _gelu(x):
    return torch.nn.functional.gelu(x, approximate="tanh")
def _silu(x):
    return torch.nn.functional.silu(x)
def _sigmoid(x):
    return torch.sigmoid(x)
def _layernorm(x, axis=-1, eps=1e-5):
    m = x.mean(dim=axis, keepdim=True)
    v = x.var(dim=axis, keepdim=True, unbiased=False)
    return (x - m) / torch.sqrt(v + eps)
def _scatter_add(tgt, idx, src, axis=0):
    return tgt.clone().index_add_(axis, idx, src)
def _segment_sum(src, seg, n):
    out = torch.zeros((n,) + src.shape[1:], dtype=src.dtype)
    return out.index_add_(0, seg, src)
def _pad(x, pw):
    flat = tuple(v for pair in reversed(pw) for v in pair)
    return torch.nn.functional.pad(x, flat)

kernel_name = 'parallel_sum__gqa_block_cached__swiglu_ffn__decode'

def setup_inputs():

    _w = (lambda a: (lambda t: t.to(torch.bfloat16) if t.is_floating_point() else t)(torch.as_tensor(a)))
    def _A_setup():
        B, Sq, D = 2, 1, 576
        Hq, Hkv, Sk, Dh = 32, 16, 32768, 128
        assert Hq % Hkv == 0, (Hq, Hkv)
        return {
            "x": _w((lambda *s: torch.randn(*s, dtype=torch.bfloat16) * 0.05)(B, Sq, D)),
            "k_cache": _w((lambda *s: torch.randn(*s, dtype=torch.bfloat16) * 3.2)(B, Hkv, Sk, Dh)),
            "v_cache": _w((lambda *s: torch.randn(*s, dtype=torch.bfloat16) * 1.6)(B, Hkv, Sk, Dh)),
            "wq": _w((lambda *s: torch.randn(*s, dtype=torch.bfloat16) * 3.2)(D, Hq * Dh) * (D ** -0.5)),
            "wo": _w((lambda *s: torch.randn(*s, dtype=torch.bfloat16) * 1.6)(Hq * Dh, D) * ((Hq * Dh) ** -0.5)),
        }
    _A_in = _A_setup()

    def _B_setup():
        B, S, D, F = 2, 1, 576, 4608
        return {
            "x": _w((lambda *s: torch.randn(*s, dtype=torch.bfloat16) * 0.05)(B, S, D)),
            "w_gate": _w((lambda *s: torch.randn(*s, dtype=torch.bfloat16) * 0.05)(D, F)),
            "w_up": _w((lambda *s: torch.randn(*s, dtype=torch.bfloat16) * 0.05)(D, F)),
            "w_down": _w((lambda *s: torch.randn(*s, dtype=torch.bfloat16) * 0.05)(F, D)),
        }
    _B_in = _B_setup()

    return {
        "A_x": _A_in["x"],
        "A_k_cache": _A_in["k_cache"],
        "A_v_cache": _A_in["v_cache"],
        "A_wq": _A_in["wq"],
        "A_wo": _A_in["wo"],
        "B_x": _B_in["x"],
        "B_w_gate": _B_in["w_gate"],
        "B_w_up": _B_in["w_up"],
        "B_w_down": _B_in["w_down"],
    }

def reference(A_x, A_k_cache, A_v_cache, A_wq, A_wo, B_x, B_w_gate, B_w_up, B_w_down):
    def _A_ref(x, k_cache, v_cache, wq, wo):
        B, Sq, D = x.shape
        Hq, Dh = 32, 128
        Hkv = k_cache.shape[1]
        rep = Hq // Hkv
        q = (lambda x, *d: x.permute(*d))((x @ wq).reshape(B, Sq, Hq, Dh), 0, 2, 1, 3)
        k = (lambda x, n, axis: torch.repeat_interleave(x, n, dim=axis))(k_cache, rep, axis=1)
        v = (lambda x, n, axis: torch.repeat_interleave(x, n, dim=axis))(v_cache, rep, axis=1)
        scores = torch.einsum("bhqd,bhkd->bhqk", q, k) * (Dh ** -0.5)
        p = _softmax(scores, axis=-1)
        o = torch.einsum("bhqk,bhkd->bhqd", p, v)
        return (lambda x, *d: x.permute(*d))(o, 0, 2, 1, 3).reshape(B, Sq, Hq * Dh) @ wo

    def _B_ref(x, w_gate, w_up, w_down):
        g = _silu(x @ w_gate)
        u = x @ w_up
        return (g * u) @ w_down

    x = A_x
    xn = _layernorm(x, axis=-1)
    return x + _A_ref(xn, A_k_cache, A_v_cache, A_wq, A_wo) + _B_ref(xn, B_w_gate, B_w_up, B_w_down)
```

```python
import sys, os, struct
KN = "parallel_sum__gqa_block_cached__swiglu_ffn__decode_kernel"
def f2u(x): return struct.unpack("<I", struct.pack("<f", x))[0]
LOG2E = f2u(1.4426950408889634)
SCALE = f2u(128 ** -0.5)
INV576 = f2u(1.0 / 576.0)
EPS = f2u(1e-5)
OOB = 0x80000000
QP, AP, ML, ZP, WS_BYTES = 0x0, 0x40000, 0x80000, 0x100000, 0x300000
L_Q, L_OW, L_MLW, L_XN, L_SG, L_SU, L_H, LDS_BYTES = 0x0, 0x400, 0x1400, 0x1C00, 0x3000, 0x4000, 0x5000, 0x5200
SPIN = 1 << 18
DPPM = "row_mask:0xf bank_mask:0xf"

class Gen:
    def __init__(s, n=5, stamps=False, ffn_depth=2, gu_flags="nt", s1n=4, nearly=4):
        s.L = []; s.n = n; s.stamps = stamps; s.fd = ffn_depth; s.guf = gu_flags; s.lab = 0; s.s1n = s1n; s.nearly = nearly
    def A(s, t): s.L.extend("    " + x if not x.endswith(":") else x for x in t.split("\n"))
    def label(s, p): s.lab += 1; return f"L_{p}_{s.lab}"
    def srd(s, d, ptr, size, off_lo=None, off_hi=None):
        if off_lo is None:
            s.A(f"s_mov_b32 s{d}, s{ptr}\ns_mov_b32 s{d+1}, s{ptr+1}")
        else:
            s.A(f"s_add_u32 s{d}, s{ptr}, {off_lo}\ns_addc_u32 s{d+1}, s{ptr+1}, {off_hi}")
        s.A(f"s_mov_b32 s{d+2}, {size:#x}\ns_mov_b32 s{d+3}, 0x20000")
    def stamp(s, k):
        if s.stamps: s.A(f"s_memrealtime s[{90+2*k}:{91+2*k}]")
    def stamp_out(s):
        if not s.stamps: return
        s.stamp(3)
        s.A("s_mul_i32 s88, s2, 6\ns_add_u32 s88, s88, s89\ns_lshl_b32 s88, s88, 5\ns_add_u32 s88, s88, 0x20000000")
        s.A("s_add_u32 s84, s26, s88\ns_addc_u32 s85, s27, 0\ns_mov_b32 s86, 32\ns_mov_b32 s87, 0x20000")
        s.A("s_waitcnt lgkmcnt(0)")
        for i in range(8): s.A(f"v_mov_b32 v{240+i}, s{90+i}")
        s.A("v_mbcnt_lo_u32_b32 v248, -1, 0\nv_mbcnt_hi_u32_b32 v248, -1, v248\nv_lshlrev_b32 v248, 5, v248")
        s.A("buffer_store_dwordx4 v[240:243], v248, s[84:87], 0 offen\nbuffer_store_dwordx4 v[244:247], v248, s[84:87], 0 offen offset:16")
    def masks(s, r, tmp):
        s.A(f"v_and_b32 v{tmp}, 1, v0\nv_cmp_eq_u32 vcc, 1, v{tmp}\nv_mov_b32 v{tmp}, 0xffff\nv_mov_b32 v{tmp+1}, 0xffff0000")
        s.A(f"v_cndmask_b32 v{tmp}, v{tmp}, v{tmp+1}, vcc\nv_bfe_u32 v{tmp+1}, v0, 1, 2")
        for w in range(4):
            s.A(f"v_cmp_eq_u32 vcc, {w}, v{tmp+1}\ns_nop 1\nv_cndmask_b32 v{r+w}, 0, v{tmp}, vcc")
    def red32(s, r, t, op="add"):
        for m in ("quad_perm:[1,0,3,2]", "quad_perm:[2,3,0,1]", "row_half_mirror", "row_mirror"):
            s.A(f"s_nop 1\nv_{op}_f32_dpp v{r}, v{r}, v{r} {m} {DPPM}")
        s.A(f"v_mov_b32 v{t}, v{r}\ns_nop 1\nv_permlane16_swap_b32 v{r}, v{t}\ns_nop 0\nv_{op}_f32 v{r}, v{r}, v{t}")
    def unpack18(s, src, dst):
        for i in range(9):
            s.A(f"v_lshlrev_b32 v{dst+2*i}, 16, v{src+i}\nv_and_b32 v{dst+2*i+1}, 0xffff0000, v{src+i}")
    def ln_stats(s, x, a, b, t):
        s.A(f"v_add_f32 v{a}, v{x}, v{x+1}\nv_add_f32 v{t}, v{x+2}, v{x+3}")
        for i in range(4, 18, 2):
            s.A(f"v_add_f32 v{a}, v{a}, v{x+i}\nv_add_f32 v{t}, v{t}, v{x+i+1}")
        s.A(f"v_add_f32 v{a}, v{a}, v{t}")
        s.red32(a, t)
        s.A(f"v_mul_f32 v{a}, {INV576:#x}, v{a}")
        s.A(f"v_sub_f32 v{t}, v{x}, v{a}\nv_sub_f32 v{t+1}, v{x+1}, v{a}\nv_mul_f32 v{b}, v{t}, v{t}\nv_mul_f32 v{t+2}, v{t+1}, v{t+1}")
        for i in range(2, 18, 2):
            s.A(f"v_sub_f32 v{t}, v{x+i}, v{a}\nv_sub_f32 v{t+1}, v{x+i+1}, v{a}\nv_fmac_f32 v{b}, v{t}, v{t}\nv_fmac_f32 v{t+2}, v{t+1}, v{t+1}")
        s.A(f"v_add_f32 v{b}, v{b}, v{t+2}")
        s.red32(b, t)
        s.A(f"v_mul_f32 v{b}, {INV576:#x}, v{b}")
        s.A(f"v_cvt_pk_bf16_f32 v{a}, 0, v{a}\nv_cvt_pk_bf16_f32 v{b}, 0, v{b}")
        s.A(f"v_add_f32 v{b}, {EPS:#x}, v{b}\nv_cvt_pk_bf16_f32 v{b}, 0, v{b}\nv_sqrt_f32 v{b}, v{b}\ns_nop 0\nv_cvt_pk_bf16_f32 v{b}, 0, v{b}")
    def norm1(s, x, mb, sd, rc, t):
        s.A(f"v_sub_f32 v{x}, v{x}, v{mb}\nv_cvt_pk_bf16_f32 v{x}, 0, v{x}\nv_mul_f32 v{t}, v{x}, v{rc}")
        s.A(f"v_fma_f32 v{x}, -v{t}, v{sd}, v{x}\nv_fma_f32 v{x}, v{x}, v{rc}, v{t}")

    def wait_tag(s, tag):
        idx = max(i for i, t in enumerate(s.q) if t == tag)
        s.A(f"s_waitcnt vmcnt({min(63, len(s.q) - 1 - idx)})")
    def issue(s, slot, kv, j):
        r = 48 + 32 * slot + 16 * kv + 4 * j
        s.A(f"s_waitcnt vmcnt({s.n-1})")
        s.A(f"buffer_load_dwordx4 v[{r}:{r+3}], v{1+kv}, s[{32+4*kv}:{35+4*kv}], s72 offen offset:{1024*j} nt")
        s.q.append((slot, kv))
    def tile(s, slot, re):
        K = 48 + 32 * slot; V = K + 16; D = 20; T = 36
        s.wait_tag((slot, 0))
        for t in range(4):
            s.A(f"v_mfma_f32_16x16x32_bf16 v[{D+4*t}:{D+4*t+3}], v[{K+4*t}:{K+4*t+3}], v[4:7], 0")
        if re: s.issue(slot, 0, 0); s.A("s_nop 2")
        else: s.A("s_nop 4")
        for t in range(4): s.A(f"v_mov_b32_dpp v{T+t}, v{D+4*t} quad_perm:[0,0,0,0] {DPPM}")
        for t in range(4): s.A(f"v_add_f32_dpp v{T+t}, v{D+4*t+1}, v{T+t} quad_perm:[1,1,1,1] {DPPM}")
        if re: s.issue(slot, 0, 1)
        for t in range(4): s.A(f"v_add_f32_dpp v{T+t}, v{D+4*t+2}, v{T+t} quad_perm:[2,2,2,2] {DPPM}")
        for t in range(4): s.A(f"v_add_f32_dpp v{T+t}, v{D+4*t+3}, v{T+t} quad_perm:[3,3,3,3] {DPPM}")
        for t in range(4): s.A(f"v_cvt_pk_bf16_f32 v{T+t}, 0, v{T+t}")
        if re: s.issue(slot, 0, 2)
        for t in range(4): s.A(f"v_mul_f32 v{T+t}, s74, v{T+t}")
        for t in range(4): s.A(f"v_cvt_pk_bf16_f32 v{T+t}, 0, v{T+t}")
        s.A(f"v_max3_f32 v19, v{T}, v{T+1}, v{T+2}\nv_max_f32 v19, v19, v{T+3}\nv_cmp_gt_f32 vcc, v19, v16")
        if re: s.issue(slot, 0, 3)
        else: s.A("s_nop 1")
        sk = s.label("skip")
        s.A(f"s_cbranch_vccz {sk}")
        s.A("v_mov_b32 v3, v19\ns_nop 1\nv_permlane16_swap_b32 v19, v3\ns_nop 0\nv_max_f32 v19, v19, v3")
        s.A("v_mov_b32 v3, v19\ns_nop 1\nv_permlane32_swap_b32 v19, v3\ns_nop 0\nv_max3_f32 v19, v19, v3, v16")
        s.A("v_sub_f32 v3, v16, v19\nv_mul_f32 v3, s75, v3\nv_exp_f32 v3, v3\nv_mov_b32 v16, v19\nv_mul_f32 v17, s76, v19")
        s.A("v_mul_f32 v18, v18, v3\nv_mul_f32 v12, v12, v3\nv_mul_f32 v13, v13, v3\nv_mul_f32 v14, v14, v3\nv_mul_f32 v15, v15, v3")
        s.A(f"{sk}:")
        for t in range(4): s.A(f"v_fma_f32 v{T+t}, v{T+t}, s75, v17")
        for t in range(4): s.A(f"v_exp_f32 v{T+t}, v{T+t}")
        s.wait_tag((slot, 1))
        s.A(f"v_add_f32 v3, v{T}, v{T+1}\nv_add_f32 v19, v{T+2}, v{T+3}")
        for t in range(4): s.A(f"v_cvt_pk_bf16_f32 v{T+t}, v{T+t}, v{T+t}")
        s.A("v_add_f32 v3, v3, v19")
        def ands(t):
            for w in range(4): s.A(f"v_and_b32 v{D+4*t+w}, v{T+t}, v{8+w}")
        def pv(t): s.A(f"v_mfma_f32_16x16x32_bf16 v[12:15], v[{V+4*t}:{V+4*t+3}], v[{D+4*t}:{D+4*t+3}], v[12:15]")
        ands(0); s.A("v_add_f32 v18, v18, v3"); ands(1)
        pv(0)
        if re: s.issue(slot, 1, 0)
        ands(2); pv(1)
        if re: s.issue(slot, 1, 1)
        ands(3); pv(2)
        if re: s.issue(slot, 1, 2)
        else: s.A("s_nop 0")
        pv(3)
        if re: s.issue(slot, 1, 3); s.A("s_add_u32 s72, s72, 16384")
    def stream(s):
        s.q = []
        s.A("L_stream:")
        s.A("s_lshl_b32 s72, s2, 20\ns_lshr_b32 s73, s2, 12")
        s.A("v_and_b32 v1, 3, v0\nv_lshlrev_b32 v1, 4, v1\nv_lshrrev_b32 v3, 4, v0\nv_lshl_add_u32 v1, v3, 6, v1\nv_bfe_u32 v3, v0, 2, 2\nv_lshl_add_u32 v1, v3, 8, v1")
        s.A("v_lshlrev_b32 v2, 4, v0")
        s.A("s_waitcnt lgkmcnt(0)")
        s.srd(32, 6, 1 << 20, "s72", "s73"); s.srd(36, 8, 1 << 20, "s72", "s73")
        s.A("s_sub_u32 s3, s3, 2\ns_lshl_b32 s72, s3, 12")
        ne = s.nearly
        first = True
        for slot in range(2 + ne):
            for kv in range(2):
                for j in range(4): s.issue(slot, kv, j)
                if first:
                    first = False
                    s.masks(8, 20)
                    s.A(f"s_mov_b32 s74, {SCALE:#x}\ns_mov_b32 s75, {LOG2E:#x}\ns_mov_b32 s76, {LOG2E | 0x80000000:#x}")
                    s.A("v_mov_b32 v12, 0\nv_mov_b32 v13, 0\nv_mov_b32 v14, 0\nv_mov_b32 v15, 0\nv_mov_b32 v16, 0xff800000\nv_mov_b32 v17, 0\nv_mov_b32 v18, 0")
                    s.A("v_bfe_u32 v3, v0, 3, 1\nv_lshlrev_b32 v3, 8, v3\nv_lshrrev_b32 v19, 4, v0\nv_lshl_add_u32 v3, v19, 6, v3\nv_and_b32 v19, 3, v0\nv_lshl_add_u32 v3, v19, 4, v3")
            s.A("s_add_u32 s72, s72, 16384")
        s.A("s_barrier")
        s.stamp(1)
        s.A(f"ds_read_b128 v[4:7], v3 offset:{L_Q}\ns_waitcnt lgkmcnt(0)")
        for i in range(ne):
            s.tile(i % 2, True); s.tile(2 + i, False)
        a = ne % 2
        rem = 64 - (2 + ne) - ne
        if rem % 2:
            s.tile(a, True); a ^= 1; rem -= 1
        s.A(f"s_mov_b32 s77, {rem//2}")
        s.A("L_loop:")
        s.q = [(a, 0)] * 4 + [(a, 1)] * 4 + [(a ^ 1, 0)] * 4 + [(a ^ 1, 1)] * 4
        s.tile(a, True); s.tile(a ^ 1, True)
        s.A("s_sub_u32 s77, s77, 1\ns_cmp_lg_u32 s77, 0\ns_cbranch_scc1 L_loop")
        s.tile(a, False); s.tile(a ^ 1, False)
        s.stamp(2)
        s.A("v_mov_b32 v3, v18\ns_nop 1\nv_permlane16_swap_b32 v18, v3\ns_nop 0\nv_add_f32 v18, v18, v3")
        s.A("v_mov_b32 v3, v18\ns_nop 1\nv_permlane32_swap_b32 v18, v3\ns_nop 0\nv_add_f32 v17, v18, v3")
        s.A("s_lshl_b32 s72, s3, 10\nv_add_u32 v20, s72, v2\nv_lshrrev_b32 v21, 1, v20")
        s.A(f"ds_write_b128 v20, v[12:15] offset:{L_OW}\nds_write_b64 v21, v[16:17] offset:{L_MLW}")
        s.srd(68, 26, WS_BYTES)
        s.A("s_waitcnt lgkmcnt(0)\ns_barrier")
        s.A("s_cmp_eq_u32 s3, 0\ns_cbranch_scc1 L_combine")
        s.A("s_cmp_lg_u32 s3, 1\ns_cbranch_scc1 L_endst")
        s.A("s_cmp_lt_u32 s2, 72\ns_cbranch_scc1 L_reduce")
        s.A("L_endst:")
        s.stamp_out()
        s.A("s_endpgm")
        s.A("L_combine:")
        s.A("v_lshrrev_b32 v21, 1, v2")
        for w in range(4): s.A(f"ds_read_b64 v[{64+2*w}:{65+2*w}], v21 offset:{L_MLW+512*w}")
        for w in range(4): s.A(f"ds_read_b128 v[{48+4*w}:{51+4*w}], v2 offset:{L_OW+1024*w}")
        s.addr_ap(24, 25, 26)
        s.A("s_mov_b32 s78, 0xfffffffe")
        s.A("s_waitcnt lgkmcnt(4)")
        s.A("v_max3_f32 v72, v64, v66, v68\nv_max_f32 v72, v72, v70")
        for w in range(4): s.A(f"v_sub_f32 v{64+2*w}, v{64+2*w}, v72")
        for w in range(4): s.A(f"v_mul_f32 v{64+2*w}, s75, v{64+2*w}")
        for w in range(4): s.A(f"v_exp_f32 v{64+2*w}, v{64+2*w}")
        s.A("s_waitcnt lgkmcnt(0)")
        s.A("v_mul_f32 v73, v64, v65")
        for r in range(4): s.A(f"v_mul_f32 v{76+r}, v64, v{48+r}")
        for w in range(1, 4):
            s.A(f"v_fmac_f32 v73, v{64+2*w}, v{65+2*w}")
            for r in range(4): s.A(f"v_fmac_f32 v{76+r}, v{64+2*w}, v{48+4*w+r}")
        for r in (76, 77, 78, 79, 72, 73): s.A(f"v_min_u32 v{r}, s78, v{r}")
        s.A("buffer_store_dwordx4 v[76:79], v24, s[68:71], s80 offen sc1")
        s.A("buffer_store_dwordx2 v[72:73], v25, s[68:71], s81 offen sc1")
        s.stamp_out()
        s.A("s_endpgm")
        s.A("L_reduce:")
        s.srd(28, 4, 2304); s.srd(60, 22, 2304)
        s.A("s_cmp_ge_u32 s2, 36\ns_cselect_b32 s72, 36, 0\ns_cselect_b32 s73, 576, 0\ns_sub_u32 s72, s2, s72")
        s.A("s_lshr_b32 s77, s72, 1\ns_lshl_b32 s77, s77, 5\ns_and_b32 s72, s72, 1\ns_lshl_b32 s72, s72, 2\ns_add_u32 s72, s72, s77\ns_add_u32 s72, s72, s73\ns_lshl_b32 s72, s72, 1")
        s.A(f"v_lshrrev_b32 v20, 2, v0\nv_lshlrev_b32 v20, 4, v20\nv_and_b32 v21, 3, v0\nv_lshl_add_u32 v20, v21, 1, v20\nv_add_u32 v20, s72, v20\nv_mov_b32 v21, {OOB:#x}\nv_cmp_gt_u32 vcc, 16, v0\ns_nop 1\nv_cndmask_b32 v20, v21, v20, vcc")
        s.A("buffer_load_ushort v22, v20, s[28:31], 0 offen")
        s.A(f"s_lshl_b32 s73, s2, 14\ns_add_u32 s73, s73, {ZP:#x}\ns_add_u32 s77, s73, 4096\ns_add_u32 s78, s73, 8192\ns_add_u32 s79, s73, 12288")
        s.A(f"s_mov_b32 s82, {SPIN}")
        s.A("L_rpoll:")
        for i in range(16):
            s.A(f"buffer_load_dwordx4 v[{48+4*i}:{51+4*i}], v2, s[68:71], s{(73,77,78,79)[i//4]} offen offset:{1024*(i%4)} sc1")
        for i in range(16):
            if i % 4 == 0: s.A(f"s_waitcnt vmcnt({12 - i})")
            if i == 0:
                s.A("v_max3_u32 v24, v48, v49, v50\nv_max_u32 v25, v51, v51")
                s.A("v_mov_b32 v28, v48\nv_mov_b32 v29, v49\nv_mov_b32 v30, v50\nv_mov_b32 v31, v51")
            else:
                r = 48 + 4 * i
                s.A(f"v_max3_u32 v24, v24, v{r}, v{r+1}\nv_max3_u32 v25, v25, v{r+2}, v{r+3}")
                for k in range(4): s.A(f"v_add_f32 v{28+k}, v{28+k}, v{r+k}")
        s.A("v_max_u32 v24, v24, v25\nv_cmp_eq_u32 vcc, -1, v24\ns_sub_u32 s82, s82, 1\ns_cbranch_scc1 L_rdone\ns_cbranch_vccnz L_rpoll")
        s.A("L_rdone:")
        s.stamp(1)
        for m in ("row_ror:4", "row_ror:8"):
            for k in range(4): s.A(f"v_add_f32_dpp v{28+k}, v{28+k}, v{28+k} {m} {DPPM}")
        s.A("s_nop 0")
        for k in range(4): s.A(f"s_nop 1\nv_mov_b32_dpp v24, v{28+k} quad_perm:[0,1,2,3] row_mask:0xf bank_mask:{1<<k:#x}")
        s.A("v_mov_b32 v3, v24\ns_nop 1\nv_permlane16_swap_b32 v24, v3\ns_nop 0\nv_add_f32 v24, v24, v3")
        s.A("v_mov_b32 v3, v24\ns_nop 1\nv_permlane32_swap_b32 v24, v3\ns_nop 0\nv_add_f32 v24, v24, v3")
        s.A("v_lshlrev_b32 v22, 16, v22\nv_add_f32 v24, v24, v22\nv_cvt_pk_bf16_f32 v24, v24, v24")
        s.A("buffer_store_short v24, v20, s[60:63], 0 offen")
        s.stamp_out()
        s.A("s_endpgm")
    def addr_ap(s, va, vm, t):
        s.A(f"v_bfe_u32 v{t}, v0, 3, 1\nv_lshlrev_b32 v{va}, 12, v{t}\nv_lshlrev_b32 v{vm}, 6, v{t}")
        s.A(f"v_lshrrev_b32 v{t}, 4, v0\nv_lshl_add_u32 v{va}, v{t}, 7, v{va}\nv_and_b32 v{t}, 7, v0\nv_lshl_add_u32 v{va}, v{t}, 4, v{va}")
        s.A(f"v_and_b32 v{t}, 0x37, v0\nv_cmp_eq_u32 vcc, 0, v{t}\nv_mov_b32 v{t}, {OOB:#x}")
        s.A("s_lshr_b32 s80, s2, 3\ns_lshl_b32 s80, s80, 4\ns_and_b32 s81, s2, 7\ns_add_u32 s81, s80, s81")
        s.A(f"v_cndmask_b32 v{vm}, v{t}, v{vm}, vcc")
        s.A(f"s_lshl_b32 s80, s81, 9\ns_add_u32 s80, s80, {AP:#x}\ns_lshl_b32 s81, s81, 3\ns_add_u32 s81, s81, {ML:#x}")
    def addr_zp(s, vz, vz4, t):
        s.A(f"v_bfe_u32 v{t}, v0, 3, 1\nv_mul_u32_u24 v{vz}, 36, v{t}\nv_lshrrev_b32 v{t}, 4, v0\nv_lshl_add_u32 v{vz}, v{t}, 1, v{vz}")
        s.A(f"v_bfe_u32 v{t}, v0, 2, 1\nv_add_u32 v{vz}, v{vz}, v{t}\nv_lshlrev_b32 v{vz}, 14, v{vz}\nv_and_b32 v{t}, 3, v0\nv_lshl_add_u32 v{vz}, v{t}, 4, v{vz}")
        s.A(f"v_cmp_gt_u32 vcc, 32, v0\nv_mov_b32 v{t}, {OOB:#x}\ns_lshl_b32 s83, s2, 6\ns_add_u32 s83, s83, {ZP:#x}\nv_cndmask_b32 v{vz4}, v{t}, v{vz}, vcc")
    def store_zp(s, regs, vz, vz4):
        for k in range(5):
            if k: s.A(f"s_add_u32 s83, s83, {8*16384}")
            s.A(f"buffer_store_dwordx4 v[{regs[k]}:{regs[k]+3}], v{vz4 if k == 4 else vz}, s[68:71], s83 offen sc1")

    def s0(s):
        s.A("L_s0:")
        s.A("s_setprio 3")
        s.A("v_mul_u32_u24 v1, 36, v0")
        s.A("s_and_b32 s72, s2, 7\ns_lshr_b32 s73, s2, 3\ns_mul_i32 s74, s72, 144")
        s.A("v_bfe_u32 v3, v0, 3, 1\nv_mul_u32_u24 v2, 1152, v3\nv_lshrrev_b32 v3, 4, v0\nv_mul_u32_u24 v13, 36, v3\nv_add3_u32 v2, v2, v13, s74")
        s.A(f"v_mul_u32_u24 v3, {18*8192}, v3\nv_and_b32 v13, 15, v0\nv_lshl_add_u32 v3, v13, 4, v3")
        s.A(f"s_mul_i32 s74, s72, {72*8192}\ns_lshl_b32 s75, s73, 8\ns_add_u32 s74, s74, s75")
        s.A("s_waitcnt lgkmcnt(0)")
        s.srd(28, 4, 2304)
        s.A("buffer_load_dwordx4 v[4:7], v1, s[28:31], 0 offen\nbuffer_load_dwordx4 v[8:11], v1, s[28:31], 0 offen offset:16\nbuffer_load_dword v12, v1, s[28:31], 0 offen offset:32")
        s.A("buffer_load_dwordx4 v[16:19], v2, s[28:31], 0 offen\nbuffer_load_dwordx4 v[20:23], v2, s[28:31], 0 offen offset:16\nbuffer_load_dword v24, v2, s[28:31], 0 offen offset:32")
        s.srd(40, 10, 576 * 8192)
        for u in range(18):
            s.A(f"buffer_load_dwordx4 v[{64+4*u}:{67+4*u}], v3, s[40:43], s74 offen nt")
            if u < 17: s.A("s_add_u32 s74, s74, 8192")
        s.srd(68, 26, WS_BYTES); s.srd(64, 24, 256)
        s.addr_ap(140, 141, 144); s.addr_zp(142, 143, 144)
        for r in range(148, 152): s.A(f"v_mov_b32 v{r}, -1")
        s.A("buffer_store_dwordx4 v[148:151], v140, s[68:71], s80 offen sc1\nbuffer_store_dwordx2 v[148:149], v141, s[68:71], s81 offen sc1")
        s.store_zp([148] * 5, 142, 143)
        s.masks(152, 144)
        s.A(f"s_waitcnt vmcnt({3+18+7})")
        s.unpack18(4, 28)
        s.ln_stats(28, 46, 47, 48)
        s.A("s_nop 0\nv_readlane_b32 s76, v46, 0\nv_readlane_b32 s77, v46, 32\nv_readlane_b32 s78, v47, 0\nv_readlane_b32 s79, v47, 32")
        s.A("v_and_b32 v48, 8, v0\nv_cmp_eq_u32 vcc, 0, v48\nv_mov_b32 v46, s77\nv_mov_b32 v48, s76\nv_mov_b32 v47, s79\nv_mov_b32 v49, s78")
        s.A("v_cndmask_b32 v46, v46, v48, vcc\nv_cndmask_b32 v47, v47, v49, vcc\nv_rcp_f32 v48, v47")
        s.A(f"s_waitcnt vmcnt({18+7})")
        s.unpack18(16, 28)
        for u in range(18): s.norm1(28 + u, 46, 47, 48, 49 + (u & 1))
        for u in range(18): s.A(f"v_cvt_pk_bf16_f32 v{28+u}, v{28+u}, v{28+u}")
        for u in range(18):
            B = 52 + 4 * (u & 1)
            for w in range(4): s.A(f"v_and_b32 v{B+w}, v{28+u}, v{152+w}")
            if u:
                Bp = 52 + 4 * ((u - 1) & 1)
                s.A(f"s_waitcnt vmcnt({7+18-u})")
                s.A(f"v_mfma_f32_16x16x32_bf16 v[60:63], v[{64+4*(u-1)}:{67+4*(u-1)}], v[{Bp}:{Bp+3}], {'0' if u == 1 else 'v[60:63]'}")
        s.A("s_waitcnt vmcnt(7)")
        s.A(f"v_mfma_f32_16x16x32_bf16 v[60:63], v[{64+4*17}:{67+4*17}], v[56:59], v[60:63]")
        s.A(f"s_lshl_b32 s74, s73, 13\ns_lshl_b32 s75, s72, 9\ns_add_u32 s74, s74, s75\ns_add_u32 s74, s74, {QP:#x}")
        s.A("v_mov_b32 v4, 1\nv_mov_b32 v5, s2")
        s.A("s_and_b32 s75, s73, 15\ns_lshl_b32 s76, s75, 4")
        s.A(f"s_lshl_b32 s77, s75, 14\ns_lshr_b32 s78, s2, 7\ns_lshl_b32 s78, s78, 12\ns_add_u32 s77, s77, s78\ns_add_u32 s77, s77, {QP:#x}")
        s.A("buffer_store_dwordx4 v[60:63], v140, s[68:71], s74 offen sc1")
        s.A("v_lshrrev_b32 v6, 5, v0\nv_lshlrev_b32 v7, 13, v6\nv_and_b32 v8, 31, v0\nv_lshl_add_u32 v7, v8, 4, v7")
        s.A("v_lshlrev_b32 v6, 8, v6\nv_bfe_u32 v8, v0, 3, 2\nv_lshl_add_u32 v6, v8, 6, v6\nv_and_b32 v8, 7, v0\nv_lshl_add_u32 v6, v8, 1, v6")
        s.A("s_waitcnt vmcnt(0)")
        s.A("buffer_store_byte v4, v5, s[64:67], 0 offen sc1")
        s.stamp(1)
        s.A(f"s_mov_b32 s82, {SPIN}")
        s.A("L_qpoll:")
        s.A("buffer_load_dwordx4 v[12:15], off, s[64:67], s76 sc1\ns_waitcnt vmcnt(0)")
        s.A("v_and_b32 v12, v12, v13\nv_and_b32 v14, v14, v15\nv_and_b32 v12, v12, v14\nv_cmp_ne_u32 vcc, 0x01010101, v12")
        s.A("s_sub_u32 s82, s82, 1\ns_cbranch_scc1 L_qdone\ns_cbranch_vccnz L_qpoll")
        s.A("L_qdone:")
        s.stamp(2)
        for rs in range(8): s.A(f"buffer_load_dwordx4 v[{64+4*rs}:{67+4*rs}], v7, s[68:71], s77 offen offset:{512*rs} sc1")
        for rs in range(1, 8):
            s.A(f"s_waitcnt vmcnt({7-rs})")
            for r in range(4): s.A(f"v_add_f32 v{64+r}, v{64+r}, v{64+4*rs+r}")
        s.A("v_cvt_pk_bf16_f32 v64, v64, v65\nv_cvt_pk_bf16_f32 v66, v66, v67")
        s.A(f"ds_write_b16 v6, v64 offset:{L_Q}\nds_write_b16_d16_hi v6, v64 offset:{L_Q+16}\nds_write_b16 v6, v66 offset:{L_Q+32}\nds_write_b16_d16_hi v6, v66 offset:{L_Q+48}")
        s.A("s_waitcnt lgkmcnt(0)\ns_barrier")
        s.stamp_out()
        s.A("s_endpgm")

    def s1(s):
        WO = 160
        s.A("L_s1:")
        s.A("v_mul_u32_u24 v1, 36, v0")
        s.A(f"v_lshrrev_b32 v2, 4, v0\nv_mul_u32_u24 v4, 1152, v2\nv_and_b32 v3, 15, v0\nv_lshl_add_u32 v4, v3, 4, v4\nv_mov_b32 v2, {OOB:#x}")
        s.A("v_cmp_gt_u32 vcc, 8, v3\ns_nop 1\nv_cndmask_b32 v5, v2, v4, vcc\nv_cmp_gt_u32 vcc, 32, v0\ns_nop 1\nv_cndmask_b32 v6, v2, v4, vcc\nv_cndmask_b32 v7, v2, v5, vcc")
        s.A("s_and_b32 s72, s2, 7\ns_lshr_b32 s73, s2, 3")
        s.A("s_lshl_b32 s74, s73, 7\ns_lshr_b32 s75, s72, 1\ns_lshl_b32 s75, s75, 5\ns_add_u32 s74, s74, s75\ns_and_b32 s75, s72, 1\ns_lshl_b32 s75, s75, 2\ns_add_u32 s74, s74, s75\ns_mul_i32 s74, s74, 1152")
        s.A("s_waitcnt lgkmcnt(0)")
        s.srd(28, 4, 2304)
        s.A("buffer_load_dwordx4 v[12:15], v1, s[28:31], 0 offen\nbuffer_load_dwordx4 v[16:19], v1, s[28:31], 0 offen offset:16\nbuffer_load_dword v20, v1, s[28:31], 0 offen offset:32")
        s.srd(44, 12, 4096 * 1152); s.srd(48, 16, 576 * 9216); s.srd(52, 18, 576 * 9216); s.srd(56, 20, 4608 * 1152)
        s.srd(68, 26, WS_BYTES); s.srd(64, 24, 256)
        s.masks(8, 24)
        s.A("s_waitcnt vmcnt(0)")
        s.unpack18(12, 28)
        s.ln_stats(28, 46, 47, 48)
        s.A("v_rcp_f32 v48, v47\ns_nop 0")
        for u in range(18): s.norm1(28 + u, 46, 47, 48, 49 + (u & 1))
        for u in range(18): s.A(f"v_cvt_pk_bf16_f32 v{28+u}, 0, v{28+u}")
        s.A("v_and_b32 v2, 31, v0\nv_mul_u32_u24 v2, 144, v2\nv_lshrrev_b32 v3, 5, v0\nv_lshl_add_u32 v2, v3, 2, v2")
        for u in range(18): s.A(f"ds_write_b32 v2, v{28+u} offset:{L_XN+8*u}")
        cnt = 0
        for rho in range(4):
            for k in range(5):
                r = WO + 4 * (rho * 5 + k)
                if cnt >= s.s1n: s.A(f"s_waitcnt vmcnt({s.s1n-1})")
                s.A(f"buffer_load_dwordx4 v[{r}:{r+3}], v{5 if k == 4 else 4}, s[44:47], s74 offen offset:{256*k} nt")
                cnt += 1
            if rho < 3: s.A(f"s_add_u32 s74, s74, {8*1152}")
        s.A("s_waitcnt lgkmcnt(0)\ns_barrier")
        s.A("s_lshl_b32 s75, s72, 5\ns_add_u32 s75, s75, s73")
        s.A("s_mul_i32 s74, s75, 36")
        s.A("v_mul_u32_u24 v2, 0x5556, v0\nv_lshrrev_b32 v2, 16, v2\nv_mul_u32_u24 v3, 3, v2\nv_sub_u32 v3, v0, v3")
        s.A(f"v_mul_u32_u24 v12, 9216, v2\nv_mul_u32_u24 v3, 12, v3\nv_add_u32 v12, v12, v3\nv_lshlrev_b32 v13, 3, v2\nv_mov_b32 v3, {OOB:#x}")
        s.A("v_cmp_gt_u32 vcc, 54, v0\ns_nop 1\nv_cndmask_b32 v12, v3, v12, vcc\nv_cndmask_b32 v13, 0, v13, vcc")
        AG, AU, W, RING = 16, 28, 40, 48
        for r in range(AG, AG + 24): s.A(f"v_mov_b32 v{r}, 0")
        fd = s.fd
        def gu_issue(sl):
            r = RING + 12 * sl
            s.A(f"buffer_load_dwordx3 v[{r}:{r+2}], v12, s[48:51], s74 offen {s.guf}\nbuffer_load_dwordx3 v[{r+4}:{r+6}], v12, s[52:55], s74 offen {s.guf}")
            s.A(f"ds_read_b64 v[{r+8}:{r+9}], v13 offset:{L_XN}")
            s.A(f"s_add_u32 s74, s74, {18*9216}\nv_add_u32 v13, 144, v13")
        def gu_comp(sl, nafter):
            r = RING + 12 * sl
            s.A(f"s_waitcnt vmcnt({2*nafter}) lgkmcnt({nafter})")
            for (src, acc) in ((r, AG), (r + 4, AU)):
                for i in range(3):
                    s.A(f"v_lshlrev_b32 v{W+2*i}, 16, v{src+i}\nv_and_b32 v{W+2*i+1}, 0xffff0000, v{src+i}")
                for i in range(3):
                    a = acc + 4 * i
                    s.A(f"v_pk_fma_f32 v[{a}:{a+1}], v[{r+8}:{r+9}], v[{W+2*i}:{W+2*i+1}], v[{a}:{a+1}] op_sel:[0,0,0] op_sel_hi:[1,0,1]")
                    s.A(f"v_pk_fma_f32 v[{a+2}:{a+3}], v[{r+8}:{r+9}], v[{W+2*i}:{W+2*i+1}], v[{a+2}:{a+3}] op_sel:[0,1,0] op_sel_hi:[1,1,1]")
        for sl in range(fd): gu_issue(sl)
        s.A(f"s_mov_b32 s77, {32//fd - 1}")
        s.A("L_gu:")
        for sl in range(fd):
            gu_comp(sl, fd - 1); gu_issue(sl)
        s.A("s_sub_u32 s77, s77, 1\ns_cmp_lg_u32 s77, 0\ns_cbranch_scc1 L_gu")
        for sl in range(fd): gu_comp(sl, fd - 1 - sl)
        DN = 60
        s.A("s_mul_i32 s74, s75, 20736")
        cnt = 0
        def dn_issue(q):
            nonlocal cnt
            for k in range(5):
                r = DN + 4 * (q * 5 + k)
                if cnt >= s.s1n: s.A(f"s_waitcnt vmcnt({s.s1n-1})")
                s.A(f"buffer_load_dwordx4 v[{r}:{r+3}], v{4 + (k == 4) + 2 * (q == 4)}, s[56:59], s74 offen offset:{256*k} nt")
                cnt += 1
            if q < 4: s.A(f"s_add_u32 s74, s74, {4*1152}")
        s.A("v_mul_u32_u24 v2, 48, v0\nv_lshlrev_b32 v3, 2, v0")
        for i in range(3):
            s.A(f"ds_write_b128 v2, v[{AG+4*i}:{AG+4*i+3}] offset:{L_SG+16*i}\nds_write_b128 v2, v[{AU+4*i}:{AU+4*i+3}] offset:{L_SU+16*i}")
        for q in range(5): dn_issue(q)
        s.A("s_waitcnt lgkmcnt(0)")
        for half, base in ((0, L_SG), (1, L_SU)):
            for rho in range(18): s.A(f"ds_read_b32 v{16+18*half+rho}, v3 offset:{base+144*rho}")
        s.A("s_waitcnt lgkmcnt(0)")
        for rho in range(1, 18): s.A(f"v_add_f32 v16, v16, v{16+rho}\nv_add_f32 v34, v34, v{34+rho}")
        s.A("v_cvt_pk_bf16_f32 v16, 0, v16\nv_cvt_pk_bf16_f32 v34, 0, v34")
        s.A(f"v_mul_f32 v17, {LOG2E | 0x80000000:#x}, v16\nv_exp_f32 v17, v17\ns_nop 0\nv_add_f32 v17, 1.0, v17\nv_rcp_f32 v17, v17\ns_nop 0\nv_mul_f32 v16, v16, v17")
        s.A("v_cvt_pk_bf16_f32 v16, 0, v16\nv_mul_f32 v16, v16, v34\nv_cvt_pk_bf16_f32 v16, v16, v16")
        s.A("v_cmp_gt_u32 vcc, 36, v0\ns_nop 1\nv_cndmask_b32 v16, 0, v16, vcc")
        s.A(f"ds_write_b32 v3, v16 offset:{L_H}")
        s.A("v_lshrrev_b32 v2, 3, v0\nv_lshlrev_b32 v2, 2, v2")
        s.A("s_waitcnt lgkmcnt(0)")
        for q in range(5): s.A(f"ds_read_b32 v{16+q}, v2 offset:{L_H+32*q}")
        s.A("s_waitcnt vmcnt(0) lgkmcnt(0)")
        Z = 40
        for q in range(5):
            B = 24 + 4 * (q & 1)
            for w in range(4): s.A(f"v_and_b32 v{B+w}, v{16+q}, v{8+w}")
            s.A("s_nop 1")
            for k in range(5):
                r = DN + 4 * (q * 5 + k)
                s.A(f"v_mfma_f32_16x16x32_bf16 v[{Z+4*k}:{Z+4*k+3}], v[{r}:{r+3}], v[{B}:{B+3}], {'0' if q == 0 else f'v[{Z+4*k}:{Z+4*k+3}]'}")
        s.A(f"s_mov_b32 s82, {SPIN}")
        s.A("L_fpoll:")
        s.A("buffer_load_dword v16, v3, s[64:67], 0 offen sc1\ns_waitcnt vmcnt(0)\nv_cmp_ne_u32 vcc, 0x01010101, v16")
        s.A("s_sub_u32 s82, s82, 1\ns_cbranch_scc1 L_fdone\ns_cbranch_vccnz L_fpoll")
        s.A("L_fdone:")
        s.addr_zp(62, 63, 64)
        s.A("v_bfe_u32 v64, v0, 3, 1\nv_lshlrev_b32 v60, 17, v64\nv_lshlrev_b32 v61, 11, v64\nv_and_b32 v64, 7, v0\nv_lshl_add_u32 v60, v64, 9, v60\nv_lshl_add_u32 v61, v64, 3, v61\nv_lshrrev_b32 v64, 4, v0\nv_lshl_add_u32 v60, v64, 4, v60")
        s.A(f"s_lshl_b32 s74, s73, 12\ns_lshl_b32 s75, s72, 6\ns_add_u32 s74, s74, s75\ns_add_u32 s74, s74, {AP:#x}\ns_lshl_b32 s75, s73, 6\ns_add_u32 s75, s75, {ML:#x}")
        s.A(f"s_mov_b32 s76, {LOG2E:#x}\ns_mov_b32 s78, 0xfffffffe\ns_mov_b32 s82, {SPIN}")
        s.stamp(1)
        s.A("s_barrier")
        s.A("L_ppoll:")
        s.A("buffer_load_dwordx2 v[20:21], v61, s[68:71], s75 offen sc1\nbuffer_load_dwordx4 v[16:19], v60, s[68:71], s74 offen sc1\ns_waitcnt vmcnt(0)")
        s.A("v_max3_u32 v22, v16, v17, v18\nv_max3_u32 v23, v19, v20, v21\nv_max_u32 v22, v22, v23\nv_cmp_eq_u32 vcc, -1, v22")
        s.A("s_sub_u32 s82, s82, 1\ns_cbranch_scc1 L_pdone\ns_cbranch_vccnz L_ppoll")
        s.A("L_pdone:")
        s.stamp(2)
        B8 = ("quad_perm:[1,0,3,2]", "quad_perm:[2,3,0,1]", "row_half_mirror")
        s.A(f"v_max_f32_dpp v22, v20, v20 {B8[0]} {DPPM}\ns_nop 1\nv_max_f32_dpp v22, v22, v22 {B8[1]} {DPPM}\ns_nop 1\nv_max_f32_dpp v22, v22, v22 {B8[2]} {DPPM}")
        s.A("v_sub_f32 v20, v20, v22\nv_mul_f32 v20, s76, v20\nv_exp_f32 v20, v20\ns_nop 0")
        for r in (21, 16, 17, 18, 19): s.A(f"v_mul_f32 v{r}, v{r}, v20")
        for m in B8:
            for r in (21, 16, 17, 18, 19): s.A(f"v_add_f32_dpp v{r}, v{r}, v{r} {m} {DPPM}")
        s.A("v_rcp_f32 v21, v21\ns_nop 0")
        for r in range(16, 20): s.A(f"v_mul_f32 v{r}, v{r}, v21")
        for r in range(16, 20): s.A(f"v_cvt_pk_bf16_f32 v{r}, v{r}, v{r}")
        for rho in range(4):
            for w in range(4): s.A(f"v_and_b32 v{24+4*rho+w}, v{16+rho}, v{8+w}")
        for k in range(5):
            for rho in range(4):
                r = WO + 4 * (rho * 5 + k)
                s.A(f"v_mfma_f32_16x16x32_bf16 v[{Z+4*k}:{Z+4*k+3}], v[{r}:{r+3}], v[{24+4*rho}:{27+4*rho}], v[{Z+4*k}:{Z+4*k+3}]")
        s.A("s_nop 3")
        for k in range(5):
            for r in range(4): s.A(f"v_min_u32 v{Z+4*k+r}, s78, v{Z+4*k+r}")
            if k: s.A(f"s_add_u32 s83, s83, {8*16384}")
            s.A(f"buffer_store_dwordx4 v[{Z+4*k}:{Z+4*k+3}], v{63 if k == 4 else 62}, s[68:71], s83 offen sc1")
        s.stamp_out()
        s.A("s_endpgm")

    def build(s):
        hdr = open("parallel_sum__gqa_block_cached__swiglu_ffn__decode.s.ref").read().split("\n")
        out = [l for l in hdr[:15] if "@launch" not in l]
        out.append(f"; @launch grid=(256,1,1) block=(384,1,1) lds={LDS_BYTES}")
        out.append('.amdgcn_target "amdgcn-amd-amdhsa--gfx950"\n.text')
        out.append(f".globl {KN}\n.p2align 8\n.type {KN},@function\n{KN}:")
        s.A("s_cmp_ge_u32 s2, 256\ns_cbranch_scc1 L_exit")
        s.stamp(0)
        s.A("s_load_dwordx16 s[4:19], s[0:1], 0\ns_load_dwordx8 s[20:27], s[0:1], 64")
        s.A("v_lshrrev_b32 v1, 6, v0\nv_and_b32 v0, 63, v0\ns_nop 0\nv_readfirstlane_b32 s3, v1")
        if s.stamps: s.A("s_mov_b32 s89, s3\ns_mov_b64 s[92:93], 0\ns_mov_b64 s[94:95], 0")
        s.A("s_cmp_eq_u32 s3, 0\ns_cbranch_scc1 L_s0\ns_cmp_eq_u32 s3, 1\ns_cbranch_scc1 L_s1")
        s.stream(); s.s0(); s.s1()
        s.A("L_exit:\ns_endpgm")
        out += s.L
        nv = 252 if s.stamps else 240
        out.append('.section .rodata,"a"\n.p2align 6')
        out.append(f".amdhsa_kernel {KN}\n  .amdhsa_next_free_vgpr {nv}\n  .amdhsa_next_free_sgpr 100\n  .amdhsa_accum_offset {nv}\n  .amdhsa_group_segment_fixed_size 0\n  .amdhsa_kernarg_size 96\n  .amdhsa_user_sgpr_count 2\n  .amdhsa_user_sgpr_kernarg_segment_ptr 1\n  .amdhsa_system_sgpr_workgroup_id_x 1\n.end_amdhsa_kernel")
        return "\n".join(out) + "\n"

if __name__ == "__main__":
    from build import build
    os.makedirs("k", exist_ok=True)
    open("k/v1.s", "w").write(Gen().build()); print(build("k/v1.s"))
    open("k/v1_st.s", "w").write(Gen(stamps=True).build()); print(build("k/v1_st.s"))
```
